```python
import torch

def _softmax(x, axis=-1):
    return torch.softmax(x, dim=axis)

def _gelu(x):
    return torch.nn.functional.gelu(x, approximate='tanh')

def _silu(x):
    return torch.nn.functional.silu(x)

def _sigmoid(x):
    return torch.sigmoid(x)

def _layernorm(x, axis=-1, eps=1e-05):
    m = x.mean(dim=axis, keepdim=True)
    v = x.var(dim=axis, keepdim=True, unbiased=False)
    return (x - m) / torch.sqrt(v + eps)

def _scatter_add(tgt, idx, src, axis=0):
    return tgt.clone().index_add_(axis, idx, src)

def _segment_sum(src, seg, n):
    out = torch.zeros((n,) + src.shape[1:], dtype=src.dtype)
    return out.index_add_(0, seg, src)

def _pad(x, pw):
    flat = tuple((v for pair in reversed(pw) for v in pair))
    return torch.nn.functional.pad(x, flat)
kernel_name = 'standalone__tree_speculative_verify_tree_attention_over_candidate_token_tree__decode'

def setup_inputs():

    _w = lambda a: (lambda t: t.to(torch.bfloat16) if t.is_floating_point() else t)(torch.as_tensor(a))
    B, Hq, Hkv, T, C, D = (1, 32, 32, 1, 8192, 128)
    tree_mask = torch.zeros((B, T, T), dtype=float)
    for b in range(B):
        parent = torch.zeros(T, dtype=torch.int64)
        for i in range(1, T):
            parent[i] = int(torch.randint(0, i, (1,)).item())
        for i in range(T):
            j = i
            tree_mask[b, i, j] = 1.0
            while j > 0:
                j = parent[j]
                tree_mask[b, i, j] = 1.0
    return {'q': _w((lambda *s: torch.randn(*s, dtype=torch.bfloat16) * 0.8)(B, Hq, T, D)), 'k_cache': _w((lambda *s: torch.randn(*s, dtype=torch.bfloat16) * 0.8)(B, Hkv, C, D)), 'v_cache': _w((lambda *s: torch.randn(*s, dtype=torch.bfloat16) * 0.05)(B, Hkv, C, D)), 'k_tree': _w((lambda *s: torch.randn(*s, dtype=torch.bfloat16) * 0.8)(B, Hkv, T, D)), 'v_tree': _w((lambda *s: torch.randn(*s, dtype=torch.bfloat16) * 0.05)(B, Hkv, T, D)), 'tree_mask': _w(tree_mask)}

def reference(q, k_cache, v_cache, k_tree, v_tree, tree_mask):
    B, Hq, T, D = q.shape
    Hkv, C = (k_cache.shape[1], k_cache.shape[2])
    rep = Hq // Hkv
    kc = (lambda x, n, axis: torch.repeat_interleave(x, n, dim=axis))(k_cache, rep, axis=1)
    vc = (lambda x, n, axis: torch.repeat_interleave(x, n, dim=axis))(v_cache, rep, axis=1)
    kt = (lambda x, n, axis: torch.repeat_interleave(x, n, dim=axis))(k_tree, rep, axis=1)
    vt = (lambda x, n, axis: torch.repeat_interleave(x, n, dim=axis))(v_tree, rep, axis=1)
    k = torch.concatenate([kc, kt], axis=2)
    v = torch.concatenate([vc, vt], axis=2)
    scale = D ** (-0.5)
    scores = torch.einsum('bhqd,bhkd->bhqk', q, k) * scale
    ctx_mask = torch.ones((B, 1, T, C), dtype=scores.dtype)
    tm = tree_mask[:, None, :, :].clone()
    full_mask = torch.concatenate([ctx_mask, tm], axis=-1)
    scores = scores + (1.0 - full_mask) * -1000000000.0
    p = _softmax(scores, axis=-1)
    return torch.einsum('bhqk,bhkd->bhqd', p, v)
```

```python
import struct
import sys
import math

NAME = "standalone__tree_speculative_verify_tree_attention_over_candidate_token_tree__decode"


def f32bits(x):
    return struct.unpack("<I", struct.pack("<f", x))[0]


def gen(kflags="", vflags="", out_path=None):
    L = []
    A = L.append
    c_scale = (128.0 ** -0.5) * math.log2(math.e)
    LOG2E = math.log2(math.e)

    hdr = open("cdna_kernels/%s.s.ref" % NAME).read().split("\n")
    for line in hdr:
        if line.startswith("; @launch"):
            break
        A(line)
    A("; @launch grid=(256,1,1) block=(512,1,1) lds=8192")
    A('.amdgcn_target "amdgcn-amd-amdhsa--gfx950"')
    A(".text")
    A(".globl %s_kernel" % NAME)
    A(".p2align 8")
    A(".type %s_kernel,@function" % NAME)
    A("%s_kernel:" % NAME)

    Q = 8
    S = 24
    VB = 56
    KB = 120
    T = 248
    MASK = 8
    AT = [12, 16]
    ACC = 20

    def vr(b, n=4):
        return "v[%d:%d]" % (b, b + n - 1)

    A("  s_cmp_ge_u32 s2, 256")
    A("  s_cbranch_scc1 L_end")
    A("  s_load_dwordx16 s[8:23], s[0:1], 0")
    A("  s_load_dwordx2 s[24:25], s[0:1], 64")
    A("  v_lshrrev_b32 v4, 6, v0")
    A("  v_and_b32 v0, 63, v0")
    A("  v_and_b32 v5, 15, v0")
    A("  v_readfirstlane_b32 s28, v4")
    A("  v_lshrrev_b32 v6, 4, v0")
    A("  v_lshlrev_b32 v3, 4, v6")
    A("  v_lshl_add_u32 v1, v5, 8, v3")
    A("  v_lshlrev_b32 v2, 4, v5")
    A("  v_lshl_add_u32 v2, v6, 10, v2")
    A("  s_and_b32 s26, s2, 31")
    A("  s_lshr_b32 s27, s2, 5")
    A("  s_lshl_b32 s3, s26, 21")
    A("  s_lshl_b32 s4, s27, 18")
    A("  s_or_b32 s3, s3, s4")
    A("  s_lshl_b32 s4, s28, 15")
    A("  s_or_b32 s3, s3, s4")
    A("  s_lshl_b32 s4, s26, 8")
    for t in range(1, 8):
        A("  s_movk_i32 s%d, 0x%x" % (68 + t, t * 4096))
    A("  s_mov_b32 s34, 32768")
    A("  s_mov_b32 s35, 0x00020000")
    A("  s_mov_b32 s38, 32768")
    A("  s_mov_b32 s39, 0x00020000")
    A("  s_movk_i32 s42, 256")
    A("  s_mov_b32 s43, 0x00020000")
    A("  s_movk_i32 s46, 256")
    A("  s_mov_b32 s47, 0x00020000")
    A("  s_waitcnt lgkmcnt(0)")
    A("  s_add_u32 s40, s8, s4")
    A("  s_addc_u32 s41, s9, 0")
    A("  s_add_u32 s44, s14, s4")
    A("  s_addc_u32 s45, s15, 0")
    A("  s_add_u32 s32, s10, s3")
    A("  s_addc_u32 s33, s11, 0")
    A("  s_add_u32 s36, s12, s3")
    A("  s_addc_u32 s37, s13, 0")

    def soff(t):
        return "0" if t == 0 else "s%d" % (68 + t)

    for i in range(4):
        A("  buffer_load_dwordx4 %s, v3, s[40:43], 0 offen offset:%d" % (vr(Q + 4 * i), 64 * i))
    for i in range(4):
        A("  buffer_load_dwordx4 %s, v3, s[44:47], 0 offen offset:%d" % (vr(S + 4 * i), 64 * i))
    for t in range(8):
        for i in range(4):
            A("  buffer_load_dwordx4 %s, v1, s[32:35], %s offen offset:%d%s" % (
                vr(KB + 16 * t + 4 * i), soff(t), 64 * i, kflags))

    def vreg(t, r):
        if t < 4:
            return VB + 16 * t + 4 * r
        return KB + 16 * (t - 4) + 4 * r

    def vload(t):
        for r in range(4):
            A("  buffer_load_dwordx4 %s, v2, s[36:39], %s offen offset:%d%s" % (
                vr(vreg(t, r)), soff(t), 256 * r, vflags))

    for t in range(4):
        vload(t)
    A("  s_add_u32 s48, s16, s4")
    A("  s_addc_u32 s49, s17, 0")
    A("  s_movk_i32 s50, 256")
    A("  s_mov_b32 s51, 0x00020000")
    A("  s_mov_b32 s52, s18")
    A("  s_mov_b32 s53, s19")
    A("  s_mov_b32 s54, 2")
    A("  s_mov_b32 s55, 0x00020000")
    A("  s_add_u32 s56, s20, s4")
    A("  s_addc_u32 s57, s21, 0")
    A("  s_movk_i32 s58, 256")
    A("  s_mov_b32 s59, 0x00020000")
    A("  s_mov_b32 s60, s22")
    A("  s_mov_b32 s61, s23")
    A("  s_movk_i32 s62, 256")
    A("  s_mov_b32 s63, 0x00020000")
    A("  s_lshl_b32 s5, s26, 13")
    A("  s_add_u32 s64, s24, s5")
    A("  s_addc_u32 s65, s25, 0")
    A("  s_movk_i32 s66, 8192")
    A("  s_mov_b32 s67, 0x00020000")
    A("  s_mov_b32 s76, 0x%08x" % f32bits(c_scale))
    A("  s_mov_b32 s77, 0x03020302")
    A("  s_mov_b32 s78, 0xff00ff00")
    A("  s_mov_b32 s79, 0xff00ff00")
    A("  s_waitcnt vmcnt(48)")
    for i in range(4):
        A("  v_mfma_f32_16x16x32_bf16 %s, %s, %s, %s" % (
            vr(S + 16), vr(S + 4 * i), vr(Q + 4 * i), "0" if i == 0 else vr(S + 16)))
    A("  s_nop 7")
    A("  s_nop 1")
    A("  v_readfirstlane_b32 s80, v%d" % (S + 16))
    waits = [44, 44, 44, 44, 44, 40, 36, 32]
    for t in range(8):
        A("  s_waitcnt vmcnt(%d)" % waits[t])
        for i in range(4):
            A("  v_mfma_f32_16x16x32_bf16 %s, %s, %s, %s" % (
                vr(S + 4 * t), vr(KB + 16 * t + 4 * i), vr(Q + 4 * i), "0" if i == 0 else vr(S + 4 * t)))
        if t < 4:
            vload(t + 4)
    A("  v_and_b32 v4, 1, v0")
    A("  v_lshlrev_b32 v4, 4, v4")
    A("  v_mov_b32 v5, 0xffff")
    A("  v_lshlrev_b32 v5, v4, v5")
    A("  v_bfe_u32 v6, v0, 1, 2")
    for i in range(4):
        A("  v_cmp_eq_u32 vcc, %d, v6" % i)
        A("  s_nop 1")
        A("  v_cndmask_b32 v%d, 0, v5, vcc" % (MASK + i))
    A("  v_max3_f32 v4, v%d, v%d, v%d" % (S, S + 1, S + 2))
    k = 3
    while k + 1 < 32:
        A("  v_max3_f32 v4, v4, v%d, v%d" % (S + k, S + k + 1))
        k += 2
    A("  v_max_f32 v4, v4, v%d" % (S + 31))
    A("  v_mov_b32 v5, v4")
    A("  s_nop 1")
    A("  v_permlane16_swap_b32 v4, v5")
    A("  v_max_f32 v4, v4, v5")
    A("  v_mov_b32 v5, v4")
    A("  s_nop 1")
    A("  v_permlane32_swap_b32 v4, v5")
    A("  v_max_f32 v4, v4, v5")
    A("  v_mul_f32 v4, s76, v4")
    A("  v_mov_b32 v7, 0")
    for t in range(8):
        b = S + 4 * t
        for r in range(4):
            A("  v_fma_f32 v%d, v%d, s76, -v4" % (b + r, b + r))
        for r in range(4):
            A("  v_exp_f32 v%d, v%d" % (b + r, b + r))
        for r in range(4):
            A("  v_and_b32 v%d, 0xffff0000, v%d" % (T + r, b + r))
        for r in range(4):
            A("  v_add_f32 v7, v7, v%d" % (b + r))
        for r in range(4):
            A("  v_sub_f32 v%d, v%d, v%d" % (T + r, b + r, T + r))
        for r in range(4):
            A("  v_cndmask_b32 v%d, v%d, v%d, s[78:79]" % (b + r, b + r, T + r))
        for r in range(4):
            A("  v_perm_b32 v%d, v%d, v%d, s77" % (b + r, b + r, b + r))
    A("  v_mov_b32 v5, v7")
    A("  s_nop 1")
    A("  v_permlane16_swap_b32 v7, v5")
    A("  v_add_f32 v7, v7, v5")
    A("  v_mov_b32 v5, v7")
    A("  s_nop 1")
    A("  v_permlane32_swap_b32 v7, v5")
    A("  v_add_f32 v5, v7, v5")
    A("  s_lshl_b32 s5, s28, 3")
    A("  s_add_u32 s5, s5, 4096")
    A("  v_mov_b32 v6, s5")
    A("  ds_write_b64 v6, v[4:5]")
    A("  v_and_b32 v6, 15, v0")
    A("  v_lshlrev_b32 v6, 5, v6")
    A("  v_bfe_u32 v7, v0, 4, 1")
    A("  v_lshl_add_u32 v6, v7, 4, v6")
    A("  v_lshrrev_b32 v7, 5, v0")
    A("  v_lshl_add_u32 v6, v7, 2, v6")
    A("  s_lshl_b32 s5, s28, 9")
    A("  v_add_u32 v6, s5, v6")
    for idx in range(32):
        t, r = idx >> 2, idx & 3
        at = AT[idx & 1]
        for i in range(4):
            A("  v_and_b32 v%d, v%d, v%d" % (at + i, S + idx, MASK + i))
        A("  s_waitcnt vmcnt(%d)" % (31 - idx))
        A("  s_nop 0")
        A("  v_mfma_f32_16x16x32_bf16 %s, %s, %s, %s" % (
            vr(ACC), vr(at), vr(vreg(t, r)), "0" if idx == 0 else vr(ACC)))
    A("  s_nop 7")
    A("  s_nop 1")
    A("  v_permlane32_swap_b32 v%d, v%d" % (ACC, ACC + 1))
    A("  v_permlane32_swap_b32 v%d, v%d" % (ACC + 2, ACC + 3))
    A("  v_add_f32 v%d, v%d, v%d" % (ACC, ACC, ACC + 1))
    A("  v_add_f32 v%d, v%d, v%d" % (ACC + 2, ACC + 2, ACC + 3))
    A("  ds_write2_b32 v6, v%d, v%d offset0:0 offset1:2" % (ACC, ACC + 2))
    A("  s_waitcnt lgkmcnt(0)")
    A("  s_barrier")
    A("  s_cmp_lg_u32 s28, 0")
    A("  s_cbranch_scc1 L_end")
    ML = 56
    O = 72
    R = 88
    A("  v_lshlrev_b32 v1, 3, v0")
    A("  v_mov_b32 v2, 4096")
    for w in range(8):
        A("  ds_read_b64 v[%d:%d], v1 offset:%d" % (O + 2 * w, O + 2 * w + 1, 512 * w))
    for j in range(4):
        A("  ds_read_b128 %s, v2 offset:%d" % (vr(ML + 4 * j), 16 * j))
    A("  v_lshlrev_b32 v3, 2, v0")
    A("  v_mov_b32 v2, 0")
    A("  buffer_load_dword v128, v3, s[48:51], 0 offen")
    A("  buffer_load_ushort v129, v2, s[52:55], 0 offen")
    A("  s_waitcnt lgkmcnt(0)")

    def combine(mreg, lreg, o0, o1, n, extra, R):
        ms = [mreg(i) for i in range(n)]
        if extra:
            ms.append(extra[0])
        A("  v_max3_f32 v%d, v%d, v%d, v%d" % (R + 2, ms[0], ms[1], ms[2]))
        k = 3
        while k + 1 < len(ms):
            A("  v_max3_f32 v%d, v%d, v%d, v%d" % (R + 2, R + 2, ms[k], ms[k + 1]))
            k += 2
        if k < len(ms):
            A("  v_max_f32 v%d, v%d, v%d" % (R + 2, R + 2, ms[k]))
        for i in range(n):
            A("  v_sub_f32 v%d, v%d, v%d" % (T + i, mreg(i), R + 2))
        if extra:
            A("  v_sub_f32 v7, v%d, v%d" % (extra[0], R + 2))
        for i in range(n):
            A("  v_exp_f32 v%d, v%d" % (T + i, T + i))
        if extra:
            A("  v_exp_f32 v7, v7")
        A("  s_nop 0")
        A("  v_mul_f32 v%d, v%d, v%d" % (R + 3, T, lreg(0)))
        A("  v_mul_f32 v%d, v%d, v%d" % (R, T, o0(0)))
        A("  v_mul_f32 v%d, v%d, v%d" % (R + 1, T, o1(0)))
        for i in range(1, n):
            A("  v_fmac_f32 v%d, v%d, v%d" % (R + 3, T + i, lreg(i)))
            A("  v_fmac_f32 v%d, v%d, v%d" % (R, T + i, o0(i)))
            A("  v_fmac_f32 v%d, v%d, v%d" % (R + 1, T + i, o1(i)))
        if extra:
            A("  v_add_f32 v%d, v%d, v7" % (R + 3, R + 3))
            A("  v_fmac_f32 v%d, v7, v%d" % (R, extra[1]))
            A("  v_fmac_f32 v%d, v7, v%d" % (R + 1, extra[2]))

    combine(lambda i: ML + 2 * i, lambda i: ML + 2 * i + 1, lambda i: O + 2 * i, lambda i: O + 2 * i + 1,
            8, None, R)
    A("  v_lshlrev_b32 v1, 4, v0")
    A("  s_lshl_b32 s5, s27, 10")
    A("  buffer_store_dwordx4 %s, v1, s[64:67], s5 offen sc1" % vr(R))
    A("  s_waitcnt vmcnt(0)")
    A("  s_lshl_b32 s6, s26, 2")
    A("  v_mov_b32 v2, s6")
    A("  v_mov_b32 v4, 1")
    A("  s_mov_b64 exec, 1")
    A("  buffer_atomic_add v4, v2, s[60:63], 0 offen sc0")
    A("  s_waitcnt vmcnt(0)")
    A("  s_mov_b64 exec, -1")
    A("  v_readfirstlane_b32 s6, v4")
    A("  s_nop 3")
    A("  s_cmp_lg_u32 s6, 7")
    A("  s_cbranch_scc1 L_end")
    P = 96
    for i in range(8):
        if i < 4:
            A("  buffer_load_dwordx4 %s, v1, s[64:67], 0 offen offset:%d sc1" % (vr(P + 4 * i), 1024 * i))
        else:
            A("  buffer_load_dwordx4 %s, v1, s[64:67], s69 offen offset:%d sc1" % (vr(P + 4 * i), 1024 * (i - 4)))
    A("  v_lshlrev_b32 v129, 16, v129")
    A("  v_sub_f32 v129, 1.0, v129")
    A("  v_mul_f32 v129, 0x%08x, v129" % f32bits(-1.0e9))
    A("  v_mul_f32 v129, 0x%08x, v129" % f32bits(LOG2E))
    A("  v_mov_b32 v130, s80")
    A("  v_fma_f32 v129, v130, s76, v129")
    A("  v_lshlrev_b32 v130, 16, v128")
    A("  v_and_b32 v131, 0xffff0000, v128")
    A("  s_waitcnt vmcnt(0)")
    combine(lambda i: P + 4 * i + 2, lambda i: P + 4 * i + 3, lambda i: P + 4 * i, lambda i: P + 4 * i + 1,
            8, (129, 130, 131), R)
    A("  v_rcp_f32 v4, v%d" % (R + 3))
    A("  s_nop 0")
    A("  v_mul_f32 v%d, v%d, v4" % (R, R))
    A("  v_mul_f32 v%d, v%d, v4" % (R + 1, R + 1))
    A("  v_cvt_pk_bf16_f32 v4, v%d, v%d" % (R, R + 1))
    A("  buffer_store_dword v4, v3, s[56:59], 0 offen")
    A("L_end:")
    A("  s_endpgm")
    A('.section .rodata,"a"')
    A(".p2align 6")
    A(".amdhsa_kernel %s_kernel" % NAME)
    A("  .amdhsa_next_free_vgpr 256")
    A("  .amdhsa_next_free_sgpr 96")
    A("  .amdhsa_accum_offset 256")
    A("  .amdhsa_group_segment_fixed_size 0")
    A("  .amdhsa_kernarg_size 72")
    A("  .amdhsa_user_sgpr_count 2")
    A("  .amdhsa_user_sgpr_kernarg_segment_ptr 1")
    A("  .amdhsa_system_sgpr_workgroup_id_x 1")
    A(".end_amdhsa_kernel")
    txt = "\n".join(L) + "\n"
    if out_path:
        open(out_path, "w").write(txt)
    return txt


if __name__ == "__main__":
    gen(out_path="cdna_kernels/%s.s" % NAME)
    gen(kflags=" nt", vflags=" nt", out_path="v1_nt.s")
```
